```python
import torch

def _softmax(x, axis=-1):
    return torch.softmax(x, dim=axis)

def _gelu(x):
    return torch.nn.functional.gelu(x, approximate='tanh')

def _silu(x):
    return torch.nn.functional.silu(x)

def _sigmoid(x):
    return torch.sigmoid(x)

def _layernorm(x, axis=-1, eps=1e-05):
    m = x.mean(dim=axis, keepdim=True)
    v = x.var(dim=axis, keepdim=True, unbiased=False)
    return (x - m) / torch.sqrt(v + eps)

def _scatter_add(tgt, idx, src, axis=0):
    return tgt.clone().index_add_(axis, idx, src)

def _segment_sum(src, seg, n):
    out = torch.zeros((n,) + src.shape[1:], dtype=src.dtype)
    return out.index_add_(0, seg, src)

def _pad(x, pw):
    flat = tuple((v for pair in reversed(pw) for v in pair))
    return torch.nn.functional.pad(x, flat)
kernel_name = 'adaLN_cond__ssm_conv_h3__geglu_ffn__prompt'

def setup_inputs():

    _w = lambda a: (lambda t: t.to(torch.bfloat16) if t.is_floating_point() else t)(torch.as_tensor(a))

    def _A_setup():
        B, S, D = (1, 2048, 576)
        ks = 4
        return {'q': _w((lambda *s: torch.randn(*s, dtype=torch.bfloat16) * 0.05)(B, S, D)), 'k': _w((lambda *s: torch.randn(*s, dtype=torch.bfloat16) * 0.8)(B, S, D)), 'v': _w((lambda *s: torch.randn(*s, dtype=torch.bfloat16) * 0.8)(B, S, D)), 'shift_k': _w((lambda *s: torch.randn(*s, dtype=torch.bfloat16) * 0.8)(D, ks) * 0.5), 'ssm_k': _w((lambda *s: torch.randn(*s, dtype=torch.bfloat16) * 0.8)(D, S) * (1.0 / S ** 0.5)), 'ssm_D': _w((lambda *s: torch.randn(*s, dtype=torch.bfloat16) * 0.8)(D))}
    _A_in = _A_setup()

    def _B_setup():
        B, S, D, F = (1, 2048, 576, 4608)
        return {'x': _w((lambda *s: torch.randn(*s, dtype=torch.bfloat16) * 0.05)(B, S, D)), 'w_gate': _w((lambda *s: torch.randn(*s, dtype=torch.bfloat16) * 0.05)(D, F)), 'w_up': _w((lambda *s: torch.randn(*s, dtype=torch.bfloat16) * 0.05)(D, F)), 'w_down': _w((lambda *s: torch.randn(*s, dtype=torch.bfloat16) * 0.05)(F, D))}
    _B_in = _B_setup()
    return {'A_q': _A_in['q'], 'A_k': _A_in['k'], 'A_v': _A_in['v'], 'A_shift_k': _A_in['shift_k'], 'A_ssm_k': _A_in['ssm_k'], 'A_ssm_D': _A_in['ssm_D'], 'B_x': _B_in['x'], 'B_w_gate': _B_in['w_gate'], 'B_w_up': _B_in['w_up'], 'B_w_down': _B_in['w_down'], 'c': _w((lambda *s: torch.randn(*s, dtype=torch.bfloat16) * 0.1)(1, 576) * 8.0), 'w_mod': _w((lambda *s: torch.randn(*s, dtype=torch.bfloat16) * 0.1)(576, 6 * 576) * 576 ** (-0.5) * 8.0)}

def reference(A_q, A_k, A_v, A_shift_k, A_ssm_k, A_ssm_D, B_x, B_w_gate, B_w_up, B_w_down, c, w_mod):

    def _A_ref(q, k, v, shift_k, ssm_k, ssm_D):
        B, S, D = q.shape
        ks = shift_k.shape[-1]
        k_pad = _pad(k, ((0, 0), (ks - 1, 0), (0, 0)))
        k_shift = torch.zeros_like(k)
        for t in range(ks):
            k_shift = k_shift + k_pad[:, t:t + S, :] * shift_k[:, ks - 1 - t][None, None, :]
        kv = k_shift * v
        L = 2 * S
        kv_pad = _pad(kv, ((0, 0), (0, S), (0, 0)))
        kf_pad = _pad(ssm_k, ((0, 0), (0, S)))
        kv_f = (lambda x, axes=(-2, -1): torch.fft.rfft2(x.float(), dim=axes))(kv_pad[:, None, :, :], axes=(1, 2))
        kf_f = (lambda x, axes=(-2, -1): torch.fft.rfft2(x.float(), dim=axes))(kf_pad[:, None, :], axes=(1, 2))
        kf_f = (lambda x, *d: x.permute(*d))(kf_f, 1, 2, 0)
        y_f = kv_f * kf_f[None, :, :, :]
        y = (lambda x, s, axes=(-2, -1): torch.fft.irfft2(x, s=s, dim=axes).to(torch.bfloat16))(y_f, (1, L), axes=(1, 2))[:, 0, :S, :]
        y = y + kv * ssm_D[None, None, :]
        return q * y

    def _B_ref(x, w_gate, w_up, w_down):
        return _gelu(x @ w_gate) * (x @ w_up) @ w_down
    x = A_q
    mod = (_silu(c) @ w_mod).reshape(c.shape[0], 6, 1, -1)
    sa, ca, ga, sb, cb, gb = (mod[:, 0].clone(), mod[:, 1].clone(), mod[:, 2].clone(), mod[:, 3].clone(), mod[:, 4].clone(), mod[:, 5].clone())
    h = _layernorm(x, axis=-1) * (1 + ca) + sa
    x = x + ga * _A_ref(h, A_k, A_v, A_shift_k, A_ssm_k, A_ssm_D)
    h = _layernorm(x, axis=-1) * (1 + cb) + sb
    x = x + gb * _B_ref(h, B_w_gate, B_w_up, B_w_down)
    return x
```

```python
import re
def v(i): return f"v{i}"
def vr(i, n): return f"v[{i}:{i+n-1}]" if n > 1 else f"v{i}"
def ar(i, n): return f"a[{i}:{i+n-1}]" if n > 1 else f"a{i}"
def s(i): return f"s{i}"
def sr(i, n): return f"s[{i}:{i+n-1}]" if n > 1 else f"s{i}"

class Asm:
    def __init__(self):
        self.lines = []
        self.nlab = 0
    def __call__(self, txt=""):
        for l in txt.split("\n"):
            l = l.strip()
            if not l: continue
            if l.endswith(":") or l.startswith(";") or l.startswith("."):
                self.lines.append(l)
            else:
                self.lines.append("    " + l)
    def label(self, base="L"):
        self.nlab += 1
        return f"{base}_{self.nlab}"
    def text(self):
        return "\n".join(self.lines) + "\n"
    def nop(self, n):
        while n > 0:
            k = min(n, 16)
            self(f"s_nop {k-1}")
            n -= k

def kernel_head(name):
    return f""".globl {name}
.p2align 8
.type {name},@function
{name}:
"""
def kernel_desc(name, vgpr, sgpr=96, accum=None):
    if accum is None:
        accum = (vgpr + 3) // 4 * 4
    return f""".p2align 6
.amdhsa_kernel {name}
  .amdhsa_next_free_vgpr {vgpr}
  .amdhsa_next_free_sgpr {sgpr}
  .amdhsa_accum_offset {accum}
  .amdhsa_group_segment_fixed_size 0
  .amdhsa_kernarg_size 120
  .amdhsa_user_sgpr_count 2
  .amdhsa_user_sgpr_kernarg_segment_ptr 1
  .amdhsa_system_sgpr_workgroup_id_x 1
.end_amdhsa_kernel
"""
def srd(a, d, base_lo, base_hi, nbytes, add=0):
    if add:
        a(f"s_add_u32 s{d}, s{base_lo}, {add}")
        a(f"s_addc_u32 s{d+1}, s{base_hi}, 0")
    else:
        a(f"s_mov_b32 s{d}, s{base_lo}")
        a(f"s_mov_b32 s{d+1}, s{base_hi}")
    a(f"s_mov_b32 s{d+2}, {nbytes}")
    a(f"s_mov_b32 s{d+3}, 0x20000")

_REG = re.compile(r"^(-|abs\()?([vas])(\d+)\)?$|^(-|abs\()?([vas])\[(\d+):(\d+)\]\)?$")
def regs(op):
    op = op.strip()
    if op in ("vcc",): return {("s", 106), ("s", 107)}
    if op == "vcc_lo": return {("s", 106)}
    if op == "vcc_hi": return {("s", 107)}
    if op == "exec": return {("s", 126), ("s", 127)}
    if op == "m0": return {("s", 124)}
    m = _REG.match(op)
    if not m: return set()
    if m.group(2): return {(m.group(2), int(m.group(3)))}
    return {(m.group(5), i) for i in range(int(m.group(6)), int(m.group(7)) + 1)}
TRANS = ("v_exp_f32", "v_log_f32", "v_rcp_f32", "v_rsq_f32", "v_sqrt_f32", "v_sin_f32", "v_cos_f32")
class Ins:
    pass
def parse(line):
    l = line.split(";")[0].strip()
    if not l or l.endswith(":") or l.startswith("."): return None
    parts = l.split(None, 1)
    I = Ins(); I.op = parts[0]; I.text = l
    rest = parts[1] if len(parts) > 1 else ""
    ops = []; cur = ""; d = 0
    for ch in rest:
        if ch == "[": d += 1
        if ch == "]": d -= 1
        if ch == "," and d == 0: ops.append(cur.strip()); cur = ""
        else: cur += ch
    if cur.strip(): ops.append(cur.strip())
    mods = ""
    if ops:
        t = ops[-1].split()
        ops[-1] = t[0]; mods = " ".join(t[1:])
    I.ops = ops; I.mods = mods
    op = I.op
    I.valu = op.startswith("v_") and not op.startswith("v_mfma")
    I.mfma = op.startswith("v_mfma")
    I.vmem = op.startswith(("buffer_", "global_", "flat_"))
    I.ds = op.startswith("ds_")
    I.salu = op.startswith("s_")
    I.trans = op.replace("_e32", "").replace("_e64", "") in TRANS
    I.dpp = "_dpp" in op or "row_" in mods or "quad_perm" in mods
    I.dst = set(); I.src = set()
    R = [regs(o) for o in ops]
    if I.mfma:
        I.dst = R[0]; I.A = R[1]; I.B = R[2]; I.C = R[3]; I.src = R[1] | R[2] | R[3]
        I.passes = 8 if "32x32x16" in op else 4
    elif I.valu:
        if op.startswith("v_cmp"):
            I.dst = R[0]; I.src = set().union(*R[1:])
        elif op.startswith(("v_permlane32_swap", "v_permlane16_swap")):
            I.dst = R[0] | R[1]; I.src = R[0] | R[1]
        elif op.startswith(("v_add_co", "v_sub_co", "v_addc_co", "v_subb_co")):
            I.dst = R[0] | R[1]; I.src = set().union(*R[2:])
        else:
            I.dst = R[0]; I.src = set().union(*R[1:]) if len(R) > 1 else set()
            if op.startswith(("v_fmac", "v_dot2c", "v_writelane")) or "d16" in op: I.src |= R[0]
            if op.startswith("v_cndmask") and len(ops) == 3: I.src |= regs("vcc")
            if I.dpp: I.src |= R[0]
    elif I.vmem:
        if "store" in op or ("atomic" in op and "sc0" not in mods):
            I.src = set().union(*R)
            I.store = True
        elif op in ("buffer_wbl2", "buffer_inv"):
            pass
        elif "lds" in mods.split() or "load_lds" in op:
            I.src = set().union(*R) | regs("m0"); I.ldsdma = True
        else:
            I.dst = R[0]; I.src = set().union(*R[1:])
            if "d16" in op: I.src |= R[0]
    elif I.ds:
        if op.startswith(("ds_write", "ds_add", "ds_min", "ds_max")) and "rtn" not in op:
            I.src = set().union(*R)
        else:
            I.dst = R[0]; I.src = set().union(*R[1:]) if len(R) > 1 else set()
            if "d16" in op: I.src |= R[0]
    elif I.salu:
        if op.startswith(("s_cmp", "s_cbranch", "s_branch", "s_waitcnt", "s_barrier", "s_nop", "s_endpgm", "s_setprio", "s_sleep", "s_bitcmp")):
            I.src = set().union(*R) if R else set()
        else:
            I.dst = R[0] if R else set(); I.src = set().union(*R[1:]) if len(R) > 1 else set()
            if "saveexec" in op: I.dst |= regs("exec"); I.src |= regs("exec")
    return I
def ws_of(I):
    if I.op == "s_nop": return int(I.ops[0], 0) + 1
    return 1
def check(text, name="", maxreport=40):
    ins = []
    for ln, line in enumerate(text.split("\n"), 1):
        I = parse(line)
        if I is not None:
            I.ln = ln; ins.append(I)
    probs = []
    n = len(ins)
    for j in range(n):
        C = ins[j]
        dist = 0
        for i in range(j - 1, max(-1, j - 24), -1):
            P = ins[i]
            need = 0; why = ""
            vd = {r for r in P.dst if r[0] in "va"}
            sd = {r for r in P.dst if r[0] == "s"}
            if P.valu and vd:
                if C.mfma and vd & C.src: need, why = 2, "valu->mfma"
                if C.valu and C.dpp and vd & C.src: need, why = max(need, 2), "valu->dpp"
                if C.op.startswith("v_permlane") and vd & C.src: need, why = max(need, 2), "valu->permlane"
                if C.op.startswith(("v_readlane", "v_readfirstlane")) and vd & C.src: need, why = max(need, 1), "valu->readlane"
                if P.trans and C.valu and not C.trans and vd & C.src: need, why = max(need, 1), "trans->valu"
                if P.trans and (C.mfma) and vd & C.src: need, why = max(need, 2), "trans->mfma"
            if P.valu and sd:
                if C.valu and sd & C.src: need, why = max(need, 4 if C.op.startswith(("v_readlane","v_writelane")) else 2), "valu sgpr->valu"
                if C.vmem and sd & C.src: need, why = max(need, 5), "valu sgpr->vmem"
            if P.mfma:
                big = 12 if P.passes == 8 else 8
                if C.mfma:
                    if P.dst & (C.A | C.B): need, why = big, "mfma D->mfma A/B"
                    elif P.dst & C.C and P.dst != C.C: need, why = (10 if P.passes == 8 else 6), "mfma D->mfma C overlap"
                elif (C.valu or C.vmem or C.ds) and P.dst & (C.src | C.dst): need, why = big, "mfma D->use"
                if C.valu and (P.C & C.dst) and not (P.dst & (C.src|C.dst)): need, why = max(need, 7 if P.passes == 8 else 3), "mfma C WAR"
            if P.salu and ("s", 124) in P.dst and getattr(C, "ldsdma", False): need, why = 1, "m0->ldsdma"
            if P.vmem and getattr(P, "store", False) and ("x4" in P.op or "x3" in P.op) and C.valu:
                data = set()
                if P.op.startswith("buffer"): data = regs(P.ops[0])
                else: data = regs(P.ops[1])
                if data & C.dst: need, why = 2, "store data WAR"
            if need > dist:
                probs.append(f"{name} line {C.ln}: [{why}] need {need} have {dist}: '{P.text}' -> '{C.text}'")
            dist += ws_of(P)
            if dist >= 20: break
    for p in probs[:maxreport]: print("HAZARD", p)
    if len(probs) > maxreport: print(f"... {len(probs)} hazards total")
    return probs
```

```python
import sys
from ag import *

NAME = "adaLN_cond__ssm_conv_h3__geglu_ffn__prompt"
S, D, F = 2048, 576, 4608
PLANE = S * D * 2
WS_UR   = 0
WS_ZT   = 0x240000
WS_H2F  = 0x480000
WS_X1   = 0x6C0000
WS_MOD  = 0x900000
WS_ACT  = 0x1000000
ACT_BYTES = S * F * 2
WS_PART = 0x2200000
NSPLIT = 5
K_Q, K_K, K_V, K_SHIFT, K_SSMK, K_SSMD, K_BX, K_WG, K_WU, K_WD, K_C, K_WMOD, K_OUT, K_DBG, K_WS = [8*i for i in range(15)]

STAMP = False
def stamp(a, i):
    if STAMP: a(f"s_memtime s[{70+2*i}:{71+2*i}]")
def stamp_out(a, n, wgs=(0, 100), tidreg="v0"):
    if not STAMP: return
    lab = a.label("Lst")
    a("s_waitcnt lgkmcnt(0)")
    a(f"s_load_dwordx2 s[66:67], s[0:1], {K_DBG}")
    a("s_mov_b32 s68, -1")
    for k, w in enumerate(wgs):
        a(f"s_cmp_eq_u32 s2, {w}")
        a(f"s_cselect_b32 s68, {k*32}, s68")
    a("s_cmp_eq_u32 s68, -1")
    a(f"s_cbranch_scc1 {lab}")
    a("s_waitcnt lgkmcnt(0)")
    a("s_mov_b32 s60, s66"); a("s_mov_b32 s61, s67"); a("s_mov_b32 s62, 256"); a("s_mov_b32 s63, 0x20000")
    a(f"v_cmp_eq_u32 vcc, 0, {tidreg}")
    a("s_and_saveexec_b64 s[64:65], vcc")
    a(f"s_cbranch_execz {lab}")
    for i in range(n):
        a(f"s_sub_u32 s69, s{70+2*i}, s70")
        a("v_mov_b32 v1, s69")
        a(f"v_mov_b32 v2, s68")
        a(f"buffer_store_dword v1, v2, s[60:63], 0 offen offset:{4*i}")
    a(f"{lab}:")

def rnd2(a, da, db, x, y, tmp, smask):
    a(f"v_cvt_pk_bf16_f32 v{tmp}, v{x}, v{y}")
    a(f"v_lshlrev_b32 v{da}, 16, v{tmp}")
    a(f"v_and_b32 v{db}, s{smask}, v{tmp}")

def unpack2(a, da, db, src, smask):
    a(f"v_lshlrev_b32 v{da}, 16, v{src}")
    a(f"v_and_b32 v{db}, s{smask}, v{src}")

def gen_A(a):
    name = "kvt_kernel"
    a(kernel_head(name))
    a("s_cmp_ge_u32 s2, 288")
    a("s_cbranch_scc1 LA_done")
    a(f"s_load_dwordx4 s[4:7], s[0:1], {K_K}")
    a(f"s_load_dwordx2 s[8:9], s[0:1], {K_SHIFT}")
    a(f"s_load_dwordx2 s[10:11], s[0:1], {K_WS}")
    a("s_and_b32 s28, s2, 31")
    a("s_lshr_b32 s29, s2, 5")
    a("s_mov_b32 s30, 0xffff0000")
    a("v_and_b32 v1, 31, v0")
    a("v_lshrrev_b32 v2, 5, v0")
    a("s_lshl_b32 s28, s28, 6")
    a("v_lshlrev_b32 v2, 3, v2")
    a("v_add_u32 v2, s28, v2")
    a("s_lshl_b32 s29, s29, 7")
    a("v_lshlrev_b32 v1, 2, v1")
    a("v_add_u32 v1, s29, v1")
    a("v_mul_u32_u24 v3, 1152, v2")
    a("v_add_u32 v4, v3, v1")
    a("v_subrev_u32 v3, 3456, v4")
    a("v_add_u32 v5, 4608, v4")
    a("v_lshlrev_b32 v6, 2, v1")
    a("v_lshlrev_b32 v7, 11, v1")
    a("v_lshlrev_b32 v8, 1, v2")
    a("v_sub_u32 v7, v7, v8")
    a("v_add_u32 v7, 4080, v7")
    a("s_waitcnt lgkmcnt(0)")
    srd(a, 12, 4, 5, PLANE)
    srd(a, 16, 6, 7, PLANE)
    srd(a, 20, 8, 9, 4608)
    srd(a, 24, 10, 11, PLANE, add=WS_UR)
    KR, VR, WR = 10, 21, 30
    a(f"buffer_load_dwordx4 v[{WR}:{WR+3}], v6, s[20:23], 0 offen")
    for j in range(3):
        a(f"buffer_load_dword v{KR+j}, v3, s[12:15], 0 offen offset:{1152*j}")
    for j in range(4):
        a(f"buffer_load_dword v{KR+3+j}, v4, s[12:15], 0 offen offset:{1152*j}")
    for j in range(4):
        a(f"buffer_load_dword v{KR+7+j}, v5, s[12:15], 0 offen offset:{1152*j}")
    for j in range(4):
        a(f"buffer_load_dword v{VR+j}, v4, s[16:19], 0 offen offset:{1152*j}")
    for j in range(4):
        a(f"buffer_load_dword v{VR+4+j}, v5, s[16:19], 0 offen offset:{1152*j}")
    W0, W1, K0, K1, V0, V1 = 34, 38, 42, 53, 64, 72
    a("s_waitcnt vmcnt(19)")
    unpack2(a, W0+0, W0+1, WR+0, 30); unpack2(a, W0+2, W0+3, WR+1, 30)
    unpack2(a, W1+0, W1+1, WR+2, 30); unpack2(a, W1+2, W1+3, WR+3, 30)
    a("s_waitcnt vmcnt(8)")
    for j in range(11):
        unpack2(a, K0+j, K1+j, KR+j, 30)
    KS0, KS1 = 80, 88
    t0, t1, t2, t3, tp = 96, 97, 98, 99, 100
    for i in range(8):
        a(f"v_mul_f32 v{t0}, v{K0+i}, v{W0+3}")
        a(f"v_mul_f32 v{t1}, v{K1+i}, v{W1+3}")
        rnd2(a, KS0+i, KS1+i, t0, t1, tp, 30)
        for t in (1, 2, 3):
            a(f"v_mul_f32 v{t0}, v{K0+i+t}, v{W0+3-t}")
            a(f"v_mul_f32 v{t1}, v{K1+i+t}, v{W1+3-t}")
            rnd2(a, t2, t3, t0, t1, tp, 30)
            a(f"v_add_f32 v{t0}, v{KS0+i}, v{t2}")
            a(f"v_add_f32 v{t1}, v{KS1+i}, v{t3}")
            rnd2(a, KS0+i, KS1+i, t0, t1, tp, 30)
    a("s_waitcnt vmcnt(0)")
    for i in range(8):
        unpack2(a, V0+i, V1+i, VR+i, 30)
        a(f"v_mul_f32 v{KS0+i}, v{KS0+i}, v{V0+i}")
        a(f"v_mul_f32 v{KS1+i}, v{KS1+i}, v{V1+i}")
    O0, O1 = 12, 16
    for jj in range(4):
        a(f"v_cvt_pk_bf16_f32 v{O0+jj}, v{KS0+7-2*jj}, v{KS0+6-2*jj}")
        a(f"v_cvt_pk_bf16_f32 v{O1+jj}, v{KS1+7-2*jj}, v{KS1+6-2*jj}")
    a("v_add_u32 v8, 4096, v7")
    a(f"buffer_store_dwordx4 v[{O0}:{O0+3}], v7, s[24:27], 0 offen")
    a(f"buffer_store_dwordx4 v[{O1}:{O1+3}], v8, s[24:27], 0 offen")
    a("LA_done:")
    a("s_endpgm")
    return kernel_desc(name, 104, 40)

HC = 4160
UOFF = 4 * HC
WREG = UOFF + 4608
def gen_B(a):
    name = "conv_kernel"
    a(kernel_head(name))
    a("s_cmp_ge_u32 s2, 252")
    a("s_cbranch_scc1 LB_done")
    a("s_cmp_ge_u32 s2, 144")
    a("s_cbranch_scc1 LB_mod")
    stamp(a, 0)
    a("v_mov_b32 v200, v0")
    a(f"s_load_dwordx4 s[4:7], s[0:1], {K_SSMK}")
    a(f"s_load_dwordx2 s[8:9], s[0:1], {K_WS}")
    a("v_lshrrev_b32 v1, 6, v0")
    a("v_and_b32 v2, 63, v0")
    a("s_mov_b32 s30, 0xffff0000")
    a("v_readfirstlane_b32 s20, v1")
    a("s_lshl_b32 s21, s2, 2")
    a("s_nop 0")
    a("s_add_u32 s21, s21, s20")
    a("s_lshl_b32 s22, s21, 12")
    a(f"s_mul_i32 s23, s20, {WREG}")
    a("v_lshlrev_b32 v3, 4, v2")
    a("s_waitcnt lgkmcnt(0)")
    srd(a, 12, 4, 5, PLANE)
    srd(a, 16, 8, 9, PLANE, add=WS_UR)
    srd(a, 24, 8, 9, PLANE, add=WS_ZT)
    a("s_lshr_b32 s28, s21, 1")
    a("s_lshl_b32 s28, s28, 2")
    a("s_add_u32 s6, s6, s28")
    a("s_addc_u32 s7, s7, 0")
    a("s_load_dword s29, s[6:7], 0")
    stamp(a, 1)
    HL = 16
    for i in range(4):
        for j in range(3):
            a(f"buffer_load_dwordx4 v[{HL+12*i+4*j}:{HL+12*i+4*j+3}], v3, s[12:15], s22 offen offset:{1024*i+4*j}")
    a("v_lshrrev_b32 v4, 3, v2")
    a("v_and_b32 v5, 7, v2")
    a("v_lshlrev_b32 v5, 1, v5")
    a("v_add_u32 v6, v4, v5")
    a("v_subrev_u32 v6, 16, v6")
    a("v_lshlrev_b32 v7, 1, v6")
    a("v_mov_b32 v8, 0")
    a("v_mov_b32 v9, 0")
    a("v_cmp_gt_u32 vcc, 32, v2")
    a("s_mov_b64 s[32:33], vcc")
    a("v_cmp_le_i32 vcc, 0, v6")
    a("s_and_b64 s[34:35], vcc, s[32:33]")
    a("v_cmp_le_i32 vcc, -1, v6")
    a("s_and_b64 s[36:37], vcc, s[32:33]")
    a("s_mov_b64 exec, s[34:35]")
    a("buffer_load_short_d16 v8, v7, s[12:15], s22 offen")
    a("s_mov_b64 exec, s[36:37]")
    a("v_add_u32 v7, 2, v7")
    a("buffer_load_short_d16_hi v9, v7, s[12:15], s22 offen")
    a("s_mov_b64 exec, -1")
    a(f"s_add_u32 m0, s23, {UOFF}")
    a("s_nop 0")
    for i in range(4):
        a(f"buffer_load_dwordx4 v3, s[16:19], s22 offen offset:{1024*i} lds")
    a(f"v_add_u32 v10, s23, v3")
    for j in range(4): a(f"v_mov_b32 v{12+j}, 0")
    a("s_mov_b64 exec, s[32:33]")
    a(f"ds_write_b128 v10, v[12:15] offset:{UOFF+4096}")
    a("s_mov_b64 exec, -1")
    T = 64
    for i in range(4):
        L0, L1, L2 = HL+12*i, HL+12*i+4, HL+12*i+8
        a(f"s_waitcnt vmcnt({3*(3-i)+2+4})")
        for j in range(4):
            a(f"v_alignbit_b32 v{T+j}, v{L1+j}, v{L0+j}, 16")
        for j in range(4):
            a(f"v_alignbit_b32 v{T+4+j}, v{L2+j}, v{L1+j}, 16")
        a(f"ds_write_b128 v10, v[{L0}:{L0+3}] offset:{0*HC+32+1024*i}")
        a(f"ds_write_b128 v10, v[{T}:{T+3}] offset:{1*HC+32+1024*i}")
        a(f"ds_write_b128 v10, v[{L1}:{L1+3}] offset:{2*HC+32+1024*i}")
        a(f"ds_write_b128 v10, v[{T+4}:{T+7}] offset:{3*HC+32+1024*i}")
        if i < 3: a("s_waitcnt lgkmcnt(0)")
    a("s_waitcnt vmcnt(4)")
    a("v_or_b32 v8, v8, v9")
    a(f"v_mul_u32_u24 v11, {HC}, v4")
    a("v_and_b32 v5, 7, v2")
    a("v_lshlrev_b32 v5, 2, v5")
    a("v_add3_u32 v11, v11, v5, s23")
    a("s_mov_b64 exec, s[32:33]")
    a("ds_write_b32 v11, v8")
    a("s_mov_b64 exec, -1")
    a("v_and_b32 v4, 15, v2")
    a("v_lshrrev_b32 v5, 4, v2")
    a("v_add_u32 v6, 1, v4")
    a("v_and_b32 v7, 3, v6")
    a("v_lshrrev_b32 v6, 2, v6")
    a(f"v_mul_u32_u24 v7, {HC}, v7")
    a("v_lshlrev_b32 v6, 3, v6")
    a("v_lshlrev_b32 v8, 4, v5")
    a("v_add3_u32 v7, v7, v6, v8")
    a("v_add_u32 v7, s23, v7")
    a("v_lshlrev_b32 v9, 5, v4")
    a("v_sub_u32 v8, v8, v9")
    a(f"v_add_u32 v8, {UOFF+480}, v8")
    a("v_add_u32 v8, s23, v8")
    a("v_lshlrev_b32 v6, 3, v5")
    a("v_add_u32 v6, v6, v9")
    a(f"v_sub_u32 v11, {UOFF+504}, v6")
    a("v_add_u32 v11, s23, v11")
    a("v_add_u32 v6, s22, v6")
    ACC = 16
    SA = [48, 112]; SB = [80, 144]
    for r in range(32): a(f"v_mov_b32 v{ACC+r}, 0")
    a("s_waitcnt vmcnt(0) lgkmcnt(0)")
    stamp(a, 2)
    def reads(st):
        out = []
        for p1 in range(8):
            out.append(f"ds_read_b64 v[{SA[st]+4*p1}:{SA[st]+4*p1+1}], v7 offset:{512*p1}")
            out.append(f"ds_read_b64 v[{SA[st]+4*p1+2}:{SA[st]+4*p1+3}], v7 offset:{512*p1+8}")
            out.append(f"ds_read_b128 v[{SB[st]+4*p1}:{SB[st]+4*p1+3}], v8 offset:{3584-512*p1}")
        return out
    def mfmas(st):
        out = []
        for t in range(7, -1, -1):
            pass
        for p1 in range(8):
            for r in range(8 - p1):
                t = p1 + r
                out.append(f"v_mfma_f32_16x16x32_bf16 v[{ACC+4*t}:{ACC+4*t+3}], v[{SA[st]+4*p1}:{SA[st]+4*p1+3}], v[{SB[st]+4*r}:{SB[st]+4*r+3}], v[{ACC+4*t}:{ACC+4*t+3}]")
        return out
    for x in reads(0): a(x)
    a("s_mov_b32 s31, 0")
    a("s_waitcnt lgkmcnt(0)")
    a("LB_loop:")
    for st in (0, 1):
        a("v_add_u32 v7, 64, v7")
        a("v_add_u32 v8, 64, v8")
        R = reads(1 - st); M = mfmas(st)
        for i, m in enumerate(M):
            a(m)
            if i < len(R): a(R[i])
        a("s_waitcnt lgkmcnt(0)")
    a("s_add_u32 s31, s31, 1")
    a("s_cmp_lt_u32 s31, 4")
    a("s_cbranch_scc1 LB_loop")
    stamp(a, 3)
    for t in range(8):
        a(f"ds_read_b64 v[{48+2*t}:{48+2*t+1}], v11 offset:{3584-512*t}")
    a("s_and_b32 s28, s21, 1")
    a("s_lshl_b32 s28, s28, 4")
    a("s_lshr_b32 s29, s29, s28")
    a("s_lshl_b32 s29, s29, 16")
    a.nop(8)
    a("s_waitcnt lgkmcnt(0)")
    for t in range(8):
        y = ACC + 4*t
        k3, k2, k1, k0 = 64, 65, 66, 67
        unpack2(a, k3, k2, 48+2*t, 30)
        unpack2(a, k1, k0, 48+2*t+1, 30)
        for (kk) in (k0, k1, k2, k3): a(f"v_mul_f32 v{kk}, s29, v{kk}")
        rnd2(a, k0, k1, k0, k1, 68, 30)
        rnd2(a, k2, k3, k2, k3, 68, 30)
        rnd2(a, y, y+1, y, y+1, 68, 30)
        rnd2(a, y+2, y+3, y+2, y+3, 68, 30)
        a(f"v_add_f32 v{y}, v{y}, v{k0}")
        a(f"v_add_f32 v{y+1}, v{y+1}, v{k1}")
        a(f"v_add_f32 v{y+2}, v{y+2}, v{k2}")
        a(f"v_add_f32 v{y+3}, v{y+3}, v{k3}")
        a(f"v_cvt_pk_bf16_f32 v{70+2*t}, v{y}, v{y+1}")
        a(f"v_cvt_pk_bf16_f32 v{70+2*t+1}, v{y+2}, v{y+3}")
        a(f"buffer_store_dwordx2 v[{70+2*t}:{70+2*t+1}], v6, s[24:27], 0 offen offset:{512*t}")
    stamp(a, 4)
    a("s_waitcnt vmcnt(0)")
    stamp(a, 5)
    stamp_out(a, 6, tidreg="v200")
    a("s_endpgm")
    a("LB_mod:")
    a(f"s_load_dwordx4 s[4:7], s[0:1], {K_C}")
    a(f"s_load_dwordx2 s[8:9], s[0:1], {K_WS}")
    a("s_mov_b32 s30, 0xffff0000")
    a("s_sub_u32 s20, s2, 144")
    a("s_lshl_b32 s21, s20, 6")
    a("v_and_b32 v1, 3, v0")
    a("v_lshrrev_b32 v2, 2, v0")
    a("v_mul_u32_u24 v3, 6912, v2")
    a("v_lshlrev_b32 v4, 4, v1")
    a("v_add3_u32 v3, v3, v4, s21")
    a("v_lshlrev_b32 v4, 1, v2")
    a("s_waitcnt lgkmcnt(0)")
    srd(a, 12, 4, 5, 1152)
    srd(a, 16, 6, 7, 576*3456*2)
    srd(a, 24, 8, 9, 6912, add=WS_MOD)
    for j in range(9):
        a(f"v_mov_b32 v{10+j}, 0")
    for j in range(9):
        a(f"buffer_load_short_d16_hi v{10+j}, v4, s[12:15], 0 offen offset:{128*j}")
    for j in range(9):
        a(f"s_mov_b32 s22, {j*64*6912}")
        a(f"buffer_load_dwordx4 v[{20+4*j}:{20+4*j+3}], v3, s[16:19], s22 offen")
    a("s_waitcnt vmcnt(9)")
    for j in range(9):
        a(f"v_mul_f32 v{56+j}, 0xbfb8aa3b, v{10+j}")
    for j in range(9):
        a(f"v_exp_f32 v{56+j}, v{56+j}")
    for j in range(9):
        a(f"v_add_f32 v{56+j}, 1.0, v{56+j}")
    for j in range(9):
        a(f"v_rcp_f32 v{56+j}, v{56+j}")
    a("s_nop 0")
    for j in range(9):
        a(f"v_mul_f32 v{56+j}, v{56+j}, v{10+j}")
    for j in range(9):
        a(f"v_cvt_pk_bf16_f32 v{56+j}, v{56+j}, v{56+j}")
        a(f"v_and_b32 v{56+j}, s30, v{56+j}")
    for r in range(8): a(f"v_mov_b32 v{66+r}, 0")
    for j in range(9):
        a(f"s_waitcnt vmcnt({8-j})")
        for d in range(4):
            unpack2(a, 74, 75, 20+4*j+d, 30)
            a(f"v_fmac_f32 v{66+2*d}, v74, v{56+j}")
            a(f"v_fmac_f32 v{66+2*d+1}, v75, v{56+j}")
    a("s_nop 1")
    for sh in (4, 8):
        for r in range(8):
            a(f"v_add_f32_dpp v{76+r}, v{66+r}, v{66+r} row_ror:{sh} row_mask:0xf bank_mask:0xf")
        a("s_nop 0")
        for r in range(8):
            a(f"v_mov_b32 v{66+r}, v{76+r}")
        a("s_nop 1")
    a("v_lshrrev_b32 v5, 4, v0")
    a("v_lshlrev_b32 v5, 7, v5")
    a("v_lshlrev_b32 v6, 5, v1")
    a("v_add_u32 v5, v5, v6")
    a("v_and_b32 v6, 15, v0")
    a("v_cmp_gt_u32 vcc, 4, v6")
    a("s_and_saveexec_b64 s[32:33], vcc")
    a("ds_write_b128 v5, v[66:69]")
    a("ds_write_b128 v5, v[70:73] offset:16")
    a("s_mov_b64 exec, s[32:33]")
    a("s_waitcnt lgkmcnt(0)")
    a("s_barrier")
    a("v_cmp_gt_u32 vcc, 32, v0")
    a("s_and_saveexec_b64 s[32:33], vcc")
    a("s_cbranch_execz LB_done")
    a("v_lshlrev_b32 v5, 2, v0")
    for j in range(16):
        a(f"ds_read_b32 v{20+j}, v5 offset:{128*j}")
    a("s_waitcnt lgkmcnt(0)")
    for j in range(1, 16):
        a(f"v_add_f32 v20, v20, v{20+j}")
    a("v_cvt_pk_bf16_f32 v20, v20, v20")
    a("v_lshlrev_b32 v5, 1, v0")
    a("v_add_u32 v5, s21, v5")
    a("buffer_store_short v20, v5, s[24:27], 0 offen")
    a("LB_done:")
    a("s_endpgm")
    return kernel_desc(name, 208, 96)

def lnstats(a, X, P, tag, ldsoff):
    sm, sq = P, P+1
    a(f"v_add_f32 v{sm}, v{X}, v{X+1}")
    a(f"v_mul_f32 v{sq}, v{X}, v{X}")
    a(f"v_fmac_f32 v{sq}, v{X+1}, v{X+1}")
    for i in range(2, 8):
        a(f"v_add_f32 v{sm}, v{sm}, v{X+i}")
        a(f"v_fmac_f32 v{sq}, v{X+i}, v{X+i}")
    a("s_nop 1")
    a(f"v_add_f32_dpp v{P+2}, v{sm}, v{sm} row_ror:8 row_mask:0xf bank_mask:0xf")
    a(f"v_add_f32_dpp v{P+3}, v{sq}, v{sq} row_ror:8 row_mask:0xf bank_mask:0xf")
    for sw in ("v_permlane16_swap_b32", "v_permlane32_swap_b32"):
        a(f"v_mov_b32 v{P}, v{P+2}")
        a(f"v_mov_b32 v{P+1}, v{P+3}")
        a("s_nop 1")
        a(f"{sw} v{P}, v{P+2}")
        a(f"{sw} v{P+1}, v{P+3}")
        a("s_nop 1")
        a(f"v_add_f32 v{P+2}, v{P}, v{P+2}")
        a(f"v_add_f32 v{P+3}, v{P+1}, v{P+3}")
    a("s_mov_b64 exec, 0xff")
    a(f"ds_write_b64 v3, v[{P+2}:{P+3}] offset:{ldsoff}")
    a("s_mov_b64 exec, -1")
    a("s_waitcnt lgkmcnt(0)")
    a("s_barrier")
    for j in range(4):
        a(f"ds_read_b128 v[{P+4+4*j}:{P+4+4*j+3}], v4 offset:{ldsoff+16*j}")
    a(f"ds_read_b64 v[{P+20}:{P+21}], v4 offset:{ldsoff+64}")
    a("s_waitcnt lgkmcnt(0)")
    for j in range(1, 9):
        a(f"v_add_f32 v{P+4}, v{P+4}, v{P+4+2*j}")
        a(f"v_add_f32 v{P+5}, v{P+5}, v{P+5+2*j}")
    a(f"v_mul_f32 v{P+4}, s31, v{P+4}")
    a(f"v_mul_f32 v{P+5}, s31, v{P+5}")
    a(f"v_fma_f32 v{P+5}, -v{P+4}, v{P+4}, v{P+5}")
    a(f"v_max_f32 v{P+5}, 0, v{P+5}")
    rnd2(a, P, P+5, P+4, P+5, P+6, 30)
    a(f"v_add_f32 v{P+5}, s29, v{P+5}")
    rnd2(a, P+5, P+7, P+5, P+5, P+6, 30)
    a(f"v_sqrt_f32 v{P+5}, v{P+5}")
    a("s_nop 0")
    rnd2(a, P+5, P+7, P+5, P+5, P+6, 30)
    a(f"v_rcp_f32 v{P+1}, v{P+5}")
    a("s_nop 0")

def modulate(a, H, X, P, SC, SH, T):
    for i in range(0, 8, 2):
        a(f"v_sub_f32 v{H+i}, v{X+i}, v{P}")
        a(f"v_sub_f32 v{H+i+1}, v{X+i+1}, v{P}")
        rnd2(a, H+i, H+i+1, H+i, H+i+1, T, 30)
        a(f"v_mul_f32 v{H+i}, v{H+i}, v{P+1}")
        a(f"v_mul_f32 v{H+i+1}, v{H+i+1}, v{P+1}")
        rnd2(a, H+i, H+i+1, H+i, H+i+1, T, 30)
        a(f"v_mul_f32 v{H+i}, v{H+i}, v{SC+i}")
        a(f"v_mul_f32 v{H+i+1}, v{H+i+1}, v{SC+i+1}")
        rnd2(a, H+i, H+i+1, H+i, H+i+1, T, 30)
        a(f"v_add_f32 v{H+i}, v{H+i}, v{SH+i}")
        a(f"v_add_f32 v{H+i+1}, v{H+i+1}, v{SH+i+1}")

def gen_C(a):
    name = "ln_kernel"
    a(kernel_head(name))
    a("s_cmp_ge_u32 s2, 256")
    a("s_cbranch_scc1 LC_done")
    stamp(a, 0)
    a(f"s_load_dwordx2 s[4:5], s[0:1], {K_Q}")
    a(f"s_load_dwordx2 s[8:9], s[0:1], {K_WS}")
    a("s_mov_b32 s30, 0xffff0000")
    a("s_mov_b32 s31, 0x3ae38e39")
    a("s_mov_b32 s29, 0x3727c5ac")
    a("v_and_b32 v1, 7, v0")
    a("v_lshrrev_b32 v2, 3, v0")
    a("s_lshl_b32 s20, s2, 3")
    a("v_add_u32 v5, s20, v1")
    a("v_mul_u32_u24 v6, 1152, v5")
    a("v_lshlrev_b32 v7, 4, v2")
    a("v_add_u32 v6, v6, v7")
    a("v_lshlrev_b32 v8, 12, v0")
    a("s_lshl_b32 s21, s2, 4")
    a("v_add_u32 v8, s21, v8")
    a("v_lshrrev_b32 v9, 6, v0")
    a("v_lshlrev_b32 v9, 3, v9")
    a("v_lshlrev_b32 v4, 7, v1")
    a("v_add_u32 v3, v4, v9")
    a("v_lshrrev_b32 v9, 5, v5")
    a("v_mul_u32_u24 v9, 36, v9")
    a("v_lshrrev_b32 v10, 1, v2")
    a("v_add_u32 v9, v9, v10")
    a("v_lshlrev_b32 v9, 10, v9")
    a("v_and_b32 v10, 31, v5")
    a("v_and_b32 v11, 1, v2")
    a("v_lshlrev_b32 v11, 5, v11")
    a("v_add_u32 v10, v10, v11")
    a("v_lshlrev_b32 v10, 4, v10")
    a("v_add_u32 v9, v9, v10")
    a("v_lshrrev_b32 v10, 4, v0")
    a("v_lshlrev_b32 v10, 1, v10")
    a("v_bfe_u32 v11, v0, 1, 1")
    a("v_add_u32 v10, v10, v11")
    a("v_lshlrev_b32 v10, 7, v10")
    a("v_bfe_u32 v11, v0, 2, 2")
    a("v_lshlrev_b32 v11, 4, v11")
    a("v_add_u32 v10, v10, v11")
    a("v_and_b32 v11, 1, v0")
    a("v_lshlrev_b32 v11, 3, v11")
    a("v_add_u32 v10, v10, v11")
    a("v_lshlrev_b32 v11, 4, v0")
    a("s_waitcnt lgkmcnt(0)")
    srd(a, 12, 4, 5, PLANE)
    srd(a, 16, 8, 9, PLANE, add=WS_ZT)
    srd(a, 20, 8, 9, 6912, add=WS_MOD)
    srd(a, 24, 8, 9, PLANE, add=WS_X1)
    srd(a, 36, 8, 9, PLANE, add=WS_H2F)
    a("buffer_load_dwordx4 v[12:15], v6, s[12:15], 0 offen")
    a("buffer_load_dwordx4 v[16:19], v8, s[16:19], 0 offen")
    for idx in range(5):
        a(f"s_mov_b32 s40, {idx*1152}")
        a(f"buffer_load_dwordx4 v[{20+4*idx}:{20+4*idx+3}], v7, s[20:23], s40 offen")
    X = 40; P = 48; Hh = 72; Z = 80; SC = 88; SH = 96; T = 104
    stamp(a, 1)
    a("s_waitcnt vmcnt(6)")
    stamp(a, 2)
    for d in range(4): unpack2(a, X+2*d, X+2*d+1, 12+d, 30)
    a("s_waitcnt vmcnt(5)")
    stamp(a, 3)
    a("ds_write_b128 v11, v[16:19] offset:2048")
    lnstats(a, X, P, "1", 0)
    a("ds_read_b64_tr_b16 v[16:17], v10 offset:2048")
    a(f"ds_read_b64_tr_b16 v[18:19], v10 offset:{2048+64}")
    a("s_waitcnt vmcnt(0)")
    stamp(a, 4)
    for d in range(4):
        unpack2(a, SC+2*d, SC+2*d+1, 24+d, 30)
        unpack2(a, SH+2*d, SH+2*d+1, 20+d, 30)
    for i in range(0, 8, 2):
        a(f"v_add_f32 v{SC+i}, 1.0, v{SC+i}")
        a(f"v_add_f32 v{SC+i+1}, 1.0, v{SC+i+1}")
        rnd2(a, SC+i, SC+i+1, SC+i, SC+i+1, T, 30)
    modulate(a, Hh, X, P, SC, SH, T)
    a("s_waitcnt lgkmcnt(0)")
    for d in range(4):
        unpack2(a, Z+2*d, Z+2*d+1, 16+d, 30)
        unpack2(a, SC+2*d, SC+2*d+1, 28+d, 30)
    for i in range(0, 8, 2):
        rnd2(a, Hh+i, Hh+i+1, Hh+i, Hh+i+1, T, 30)
        a(f"v_mul_f32 v{Hh+i}, v{Hh+i}, v{Z+i}")
        a(f"v_mul_f32 v{Hh+i+1}, v{Hh+i+1}, v{Z+i+1}")
        rnd2(a, Hh+i, Hh+i+1, Hh+i, Hh+i+1, T, 30)
        a(f"v_mul_f32 v{Hh+i}, v{Hh+i}, v{SC+i}")
        a(f"v_mul_f32 v{Hh+i+1}, v{Hh+i+1}, v{SC+i+1}")
        rnd2(a, Hh+i, Hh+i+1, Hh+i, Hh+i+1, T, 30)
        a(f"v_add_f32 v{X+i}, v{X+i}, v{Hh+i}")
        a(f"v_add_f32 v{X+i+1}, v{X+i+1}, v{Hh+i+1}")
        a(f"v_cvt_pk_bf16_f32 v{12+i//2}, v{X+i}, v{X+i+1}")
        unpack2(a, X+i, X+i+1, 12+i//2, 30)
    a("buffer_store_dwordx4 v[12:15], v6, s[24:27], 0 offen")
    lnstats(a, X, P, "2", 1024)
    for d in range(4):
        unpack2(a, SC+2*d, SC+2*d+1, 36+d, 30)
        unpack2(a, SH+2*d, SH+2*d+1, 32+d, 30)
    for i in range(0, 8, 2):
        a(f"v_add_f32 v{SC+i}, 1.0, v{SC+i}")
        a(f"v_add_f32 v{SC+i+1}, 1.0, v{SC+i+1}")
        rnd2(a, SC+i, SC+i+1, SC+i, SC+i+1, T, 30)
    modulate(a, Hh, X, P, SC, SH, T)
    for i in range(0, 8, 2):
        a(f"v_cvt_pk_bf16_f32 v{16+i//2}, v{Hh+i}, v{Hh+i+1}")
    a("buffer_store_dwordx4 v[16:19], v9, s[36:39], 0 offen")
    stamp(a, 5)
    a("s_waitcnt vmcnt(0)")
    stamp(a, 6)
    stamp_out(a, 7)
    a("LC_done:")
    a("s_endpgm")
    return kernel_desc(name, 112, 96)

def build(kernels, fname):
    a = Asm()
    hdr = open("cdna_kernels/" + NAME + ".s.ref").read().split("; Override launch")[0]
    a.lines += hdr.rstrip("\n").split("\n")
    L = {"A": "; @launch kernel=kvt_kernel grid=(288,1,1) block=(256,1,1) lds=0",
         "B": f"; @launch kernel=conv_kernel grid=(252,1,1) block=(256,1,1) lds={4*WREG}",
         "C": "; @launch kernel=ln_kernel grid=(256,1,1) block=(576,1,1) lds=11264",
         }
    for k in kernels: a(L[k])
    a('.amdgcn_target "amdgcn-amd-amdhsa--gfx950"')
    a(".text")
    descs = []
    G = {"A": gen_A, "B": gen_B, "C": gen_C}
    for k in dict.fromkeys(kernels):
        descs.append(G[k](a))
    a('.section .rodata,"a"')
    for d in descs: a(d)
    t = a.text()
    check(t, fname)
    open(fname, "w").write(t)

if __name__ == "__main__":
    if len(sys.argv) > 1 and sys.argv[1] == "stamp": STAMP = True
    build(["A", "B", "C"], "front.s")
```

```python
from ag import *
import struct
from gen import *
import gen
def f2u(x): return struct.unpack('<I', struct.pack('<f', x))[0]
LOG2E = 1.4426950408889634
C0 = -2.0 * LOG2E * 0.7978845608028654
C1 = C0 * 0.044715

G1_SLOT = 18560
G1_R = 6
def gen_G1(a):
    name = "gemm1_kernel"
    a(kernel_head(name))
    a("s_cmp_ge_u32 s2, 256")
    a("s_cbranch_scc1 LG1_done")
    stamp(a, 0)
    a(f"s_load_dwordx4 s[4:7], s[0:1], {K_WG}")
    a(f"s_load_dwordx2 s[24:25], s[0:1], {K_WS}")
    a("v_lshrrev_b32 v1, 6, v0")
    a("v_and_b32 v2, 63, v0")
    a("s_mov_b32 s30, 0xffff0000")
    a("v_readfirstlane_b32 s20, v1")
    a("s_and_b32 s21, s2, 7")
    a("s_lshr_b32 s22, s2, 3")
    a("s_and_b32 s23, s22, 3")
    a("s_lshl_b32 s21, s21, 2")
    a("s_add_u32 s21, s21, s23")
    a("s_lshr_b32 s22, s22, 2")
    a("s_and_b32 s26, s20, 3")
    a("s_lshl_b32 s26, s26, 3")
    a("s_mul_i32 s27, s21, 288")
    for i in range(3):
        a(f"v_add_u32 v4, {64*i}, v2")
        a("v_mul_u32_u24 v5, 3641, v4")
        a("v_lshrrev_b32 v5, 16, v5")
        a("v_mul_u32_u24 v6, 18, v5")
        a("v_sub_u32 v6, v4, v6")
        a("v_add_u32 v5, s26, v5")
        a("v_mul_u32_u24 v5, 9216, v5")
        a("v_lshlrev_b32 v6, 4, v6")
        a(f"v_add3_u32 v{10+i}, v5, v6, s27")
        if i: a(f"v_subrev_u32 v{10+i}, {1024*i}, v{10+i}")
    a("s_lshr_b32 s28, s20, 2")
    a("s_mul_i32 s28, s28, 9344")
    a("s_and_b32 s29, s20, 3")
    a("s_mul_i32 s29, s29, 2304")
    a("s_add_u32 s28, s28, s29")
    a("s_lshl_b32 s29, s22, 3")
    a("s_add_u32 s29, s29, s20")
    a("s_mul_i32 s31, s29, 36864")
    a("v_lshlrev_b32 v8, 4, v2")
    a("v_add_u32 v9, s31, v8")
    a("s_mul_i32 s31, s29, 288")
    a("s_mul_i32 s33, s21, 9")
    a("s_add_u32 s31, s31, s33")
    a("s_lshl_b32 s31, s31, 10")
    a("v_add_u32 v8, s31, v8")
    a("v_bfe_u32 v4, v2, 4, 1")
    a("v_mul_u32_u24 v4, 9344, v4")
    a("v_lshrrev_b32 v5, 5, v2")
    a("v_lshlrev_b32 v5, 3, v5")
    a("v_bfe_u32 v6, v2, 2, 2")
    a("v_add_u32 v5, v5, v6")
    a("v_mul_u32_u24 v5, 288, v5")
    a("v_and_b32 v6, 3, v2")
    a("v_lshlrev_b32 v6, 3, v6")
    a("v_add3_u32 v13, v4, v5, v6")
    a("s_waitcnt lgkmcnt(0)")
    a("s_cmp_lt_u32 s20, 4")
    a("s_cselect_b32 s8, s4, s6")
    a("s_cselect_b32 s9, s5, s7")
    a(f"s_mov_b32 s10, {576*4608*2}")
    a("s_mov_b32 s11, 0x20000")
    srd(a, 12, 24, 25, PLANE, add=WS_H2F)
    srd(a, 16, 24, 25, ACT_BYTES, add=WS_ACT)
    ACC = 16
    AF = 160
    HB = 184
    VA, VB = 14, 15
    for r in range(144): a(f"v_mov_b32 v{ACC+r}, 0")
    a("s_mov_b32 s34, 0"); a("s_mov_b32 s35, 0"); a("s_mov_b32 s36, 0")
    def dma():
        a("s_add_u32 m0, s35, s28")
        a(f"s_add_u32 s35, s35, {G1_SLOT}")
        a(f"buffer_load_dwordx4 v10, s[8:11], s34 offen lds")
        a(f"buffer_load_dwordx4 v11, s[8:11], s34 offen offset:1024 lds")
        a("s_mov_b64 exec, 0xffff")
        a(f"buffer_load_dwordx4 v12, s[8:11], s34 offen offset:2048 lds")
        a("s_mov_b64 exec, -1")
        a(f"s_add_u32 s34, s34, {32*9216}")
        a(f"s_cmp_ge_u32 s35, {G1_R*G1_SLOT}")
        a("s_cselect_b32 s35, 0, s35")
    def hload(slot3):
        a(f"buffer_load_dwordx4 v[{HB+8*slot3}:{HB+8*slot3+3}], v9, s[12:15], s36 offen")
        a(f"buffer_load_dwordx4 v[{HB+8*slot3+4}:{HB+8*slot3+7}], v9, s[12:15], s36 offen offset:1024")
        a("s_add_u32 s36, s36, 2048")
    dma(); dma(); hload(0); dma(); hload(1); dma()
    stamp(a, 1)
    a("s_waitcnt vmcnt(13)")
    a("s_barrier")
    stamp(a, 2)
    PD = 4
    def rd(n_frag, vaddr, n):
        ks, c = divmod(n, 9)
        f = AF + 4*(n_frag % 6)
        a(f"ds_read_b64_tr_b16 v[{f}:{f+1}], v{vaddr} offset:{ks*4608+32*c}")
        a(f"ds_read_b64_tr_b16 v[{f+2}:{f+3}], v{vaddr} offset:{ks*4608+32*c+1152}")
    a(f"v_mov_b32 v{VA}, v13")
    a(f"s_mov_b32 s37, {G1_SLOT}")
    for n in range(PD): rd(n, VA, n)
    a("s_mov_b32 s38, 0")
    a("LG1_loop:")
    for u in range(3):
        cur, nxt = (VA, VB)
        a("s_waitcnt vmcnt(8)")
        a("s_barrier")
        a(f"v_add_u32 v{nxt}, s37, v13")
        a(f"s_add_u32 s37, s37, {G1_SLOT}")
        a(f"s_cmp_ge_u32 s37, {G1_R*G1_SLOT}")
        a("s_cselect_b32 s37, 0, s37")
        for n in range(18):
            g = u*18 + n
            if n + PD < 18: rd(g + PD, cur, n + PD)
            else: rd(g + PD, nxt, n + PD - 18)
            if n == 1: hload((u + 2) % 3)
            if n == 3: dma()
            a(f"s_waitcnt lgkmcnt({2*PD})")
            ks, c = divmod(n, 9)
            f = AF + 4*(g % 6)
            hb = HB + 8*u + 4*ks
            a(f"v_mfma_f32_32x32x16_bf16 v[{ACC+16*c}:{ACC+16*c+15}], v[{f}:{f+3}], v[{hb}:{hb+3}], v[{ACC+16*c}:{ACC+16*c+15}]")
        a(f"v_mov_b32 v{cur}, v{nxt}")
    a("s_add_u32 s38, s38, 1")
    a("s_cmp_lt_u32 s38, 6")
    a("s_cbranch_scc1 LG1_loop")
    stamp(a, 3)
    a("s_waitcnt vmcnt(0) lgkmcnt(0)")
    a.nop(12)
    a(f"s_mov_b32 s40, {f2u(C0)}")
    a(f"s_mov_b32 s41, {f2u(C1)}")
    a("v_mov_b32 v200, s40")
    a("v_mov_b32 v201, s41")
    T = 160
    for c in range(9):
        A = ACC + 16*c
        for r in range(0, 8, 2):
            rnd2(a, A+r, A+r+1, A+r, A+r+1, T, 30)
            rnd2(a, A+8+r, A+8+r+1, A+8+r, A+8+r+1, T+1, 30)
        for r in range(8): a(f"v_mul_f32 v{T+2+r}, v{A+r}, v{A+r}")
        for r in range(8): a(f"v_fma_f32 v{T+2+r}, v{T+2+r}, v201, v200")
        for r in range(8): a(f"v_mul_f32 v{T+2+r}, v{T+2+r}, v{A+r}")
        for r in range(8): a(f"v_exp_f32 v{T+2+r}, v{T+2+r}")
        for r in range(8): a(f"v_add_f32 v{T+2+r}, 1.0, v{T+2+r}")
        for r in range(8): a(f"v_rcp_f32 v{T+2+r}, v{T+2+r}")
        for r in range(8): a(f"v_mul_f32 v{A+r}, v{A+r}, v{T+2+r}")
        for r in range(0, 8, 2):
            rnd2(a, A+r, A+r+1, A+r, A+r+1, T, 30)
        for r in range(8): a(f"v_mul_f32 v{A+r}, v{A+r}, v{A+8+r}")
        o = 172 + 4*(c % 2)
        for r in range(0, 8, 2):
            a(f"v_cvt_pk_bf16_f32 v{o+r//2}, v{A+r}, v{A+r+1}")
        if c < 4:
            a(f"buffer_store_dwordx4 v[{o}:{o+3}], v8, s[16:19], 0 offen offset:{1024*c}")
        else:
            a(f"s_mov_b32 s42, {1024*(c//4*4)}")
            a(f"buffer_store_dwordx4 v[{o}:{o+3}], v8, s[16:19], s42 offen offset:{1024*(c%4)}")
    stamp(a, 4)
    if gen.STAMP:
        a("s_waitcnt vmcnt(0)")
        stamp(a, 5)
        stamp_out(a, 6)
    a("LG1_done:")
    a("s_endpgm")
    return kernel_desc(name, 208, 96)

G2_SLOT = 24576
G2_R = 6
def gen_G2(a):
    name = "gemm2_kernel"
    a(kernel_head(name))
    a("s_cmp_ge_u32 s2, 240")
    a("s_cbranch_scc1 LG2_done")
    stamp(a, 0)
    a(f"s_load_dwordx2 s[4:5], s[0:1], {K_WD}")
    a(f"s_load_dwordx2 s[24:25], s[0:1], {K_WS}")
    a("v_lshrrev_b32 v1, 6, v0")
    a("v_and_b32 v2, 63, v0")
    a("v_readfirstlane_b32 s20, v1")
    a("s_and_b32 s21, s2, 7")
    a("s_lshr_b32 s22, s2, 3")
    a("s_mul_i32 s23, s22, 0x5556")
    a("s_lshr_b32 s23, s23, 16")
    a("s_mul_i32 s26, s23, 3")
    a("s_sub_u32 s26, s22, s26")
    a("s_mul_i32 s21, s21, 10")
    a("s_add_u32 s21, s21, s23")
    a("s_lshr_b32 s22, s21, 4")
    a("s_and_b32 s21, s21, 15")
    a("s_mul_i32 s23, s22, 60")
    a("s_sub_i32 s27, s22, 2")
    a("s_max_i32 s27, s27, 0")
    a("s_lshl_b32 s27, s27, 2")
    a("s_sub_u32 s23, s23, s27")
    a("s_cmp_lt_u32 s22, 2")
    a("s_cselect_b32 s27, 60, 56")
    a("v_lshrrev_b32 v4, 5, v2")
    a("v_bfe_u32 v5, v2, 2, 3")
    a("v_and_b32 v6, 3, v2")
    a("v_lshlrev_b32 v4, 6, v4")
    a("v_lshlrev_b32 v6, 4, v6")
    a("v_add_u32 v4, v4, v6")
    a("v_mul_u32_u24 v5, 1152, v5")
    a("v_add_u32 v4, v4, v5")
    a("s_mul_i32 s28, s26, 384")
    for i in range(3):
        a(f"s_add_u32 s29, s20, {8*i}")
        a("s_mul_i32 s31, s29, 0x2aab")
        a("s_lshr_b32 s31, s31, 16")
        a("s_mul_i32 s33, s31, 6")
        a("s_sub_u32 s33, s29, s33")
        a("s_lshr_b32 s34, s33, 1")
        a("s_and_b32 s33, s33, 1")
        a("s_lshl_b32 s31, s31, 4")
        a("s_lshl_b32 s33, s33, 3")
        a("s_add_u32 s31, s31, s33")
        a("s_mul_i32 s31, s31, 1152")
        a("s_lshl_b32 s34, s34, 7")
        a("s_add_u32 s31, s31, s34")
        a("s_add_u32 s31, s31, s28")
        a(f"v_add_u32 v{10+i}, s31, v4")
    a("s_and_b32 s29, s20, 3")
    a("s_lshl_b32 s31, s21, 2")
    a("s_add_u32 s31, s31, s29")
    a("s_mul_i32 s33, s31, 288")
    a("s_add_u32 s33, s33, s23")
    a("s_lshl_b32 s33, s33, 10")
    a("s_lshr_b32 s34, s20, 2")
    a("v_lshlrev_b32 v9, 4, v2")
    a("s_lshl_b32 s35, s34, 10")
    a("v_add_u32 v9, s35, v9")
    a("v_lshrrev_b32 v4, 5, v2")
    a("v_lshlrev_b32 v4, 2, v4")
    a("v_bfe_u32 v5, v2, 2, 2")
    a("v_add_u32 v4, v4, v5")
    a("v_lshlrev_b32 v4, 6, v4")
    a("v_bfe_u32 v5, v2, 4, 1")
    a("v_lshlrev_b32 v5, 5, v5")
    a("v_and_b32 v6, 3, v2")
    a("v_lshlrev_b32 v6, 3, v6")
    a("v_add3_u32 v13, v4, v5, v6")
    a("s_mul_i32 s35, s34, 6144")
    a("v_add_u32 v13, s35, v13")
    a("s_waitcnt lgkmcnt(0)")
    srd(a, 8, 4, 5, 4608*576*2)
    a("s_add_u32 s12, s24, s33")
    a("s_addc_u32 s13, s25, 0")
    a(f"s_add_u32 s12, s12, {WS_ACT}")
    a("s_addc_u32 s13, s13, 0")
    a("s_lshl_b32 s14, s27, 10")
    a("s_mov_b32 s15, 0x20000")
    srd(a, 16, 24, 25, NSPLIT*PLANE, add=WS_PART)
    ACC = 16
    AF = 112
    HB = 136
    VA, VB = 14, 15
    for r in range(96): a(f"v_mov_b32 v{ACC+r}, 0")
    a("s_mul_i32 s36, s23, 18432")
    a("s_mov_b32 s37, 0")
    a("s_mov_b32 s38, 0")
    a("s_lshl_b32 s39, s20, 10")
    def dma():
        for i in range(3):
            a(f"s_add_u32 m0, s37, s39")
            if i: a(f"s_add_u32 m0, m0, {8192*i}")
            else: a("s_nop 0")
            a("s_nop 0")
            a(f"buffer_load_dwordx4 v{10+i}, s[8:11], s36 offen lds")
        a(f"s_add_u32 s37, s37, {G2_SLOT}")
        a(f"s_add_u32 s36, s36, {64*1152}")
        a(f"s_cmp_ge_u32 s37, {G2_R*G2_SLOT}")
        a("s_cselect_b32 s37, 0, s37")
    def bload(slot3):
        a(f"buffer_load_dwordx4 v[{HB+8*slot3}:{HB+8*slot3+3}], v9, s[12:15], s38 offen")
        a(f"buffer_load_dwordx4 v[{HB+8*slot3+4}:{HB+8*slot3+7}], v9, s[12:15], s38 offen offset:2048")
        a("s_add_u32 s38, s38, 4096")
    dma(); dma(); bload(0); dma(); bload(1); dma()
    stamp(a, 1)
    a("s_waitcnt vmcnt(13)")
    a("s_barrier")
    stamp(a, 2)
    PD = 4
    def rd(g, vaddr, n):
        kk, j = divmod(n, 6)
        f = AF + 4*(g % 6)
        off = kk*12288 + (j >> 1)*2048 + (j & 1)*512
        a(f"ds_read_b64_tr_b16 v[{f}:{f+1}], v{vaddr} offset:{off}")
        a(f"ds_read_b64_tr_b16 v[{f+2}:{f+3}], v{vaddr} offset:{off+1024}")
    a(f"v_mov_b32 v{VA}, v13")
    a(f"s_mov_b32 s40, {G2_SLOT}")
    for n in range(PD): rd(n, VA, n)
    a("s_mov_b32 s41, 0")
    a("LG2_loop:")
    for u in range(3):
        cur, nxt = VA, VB
        a("s_waitcnt vmcnt(8)")
        a("s_barrier")
        a(f"v_add_u32 v{nxt}, s40, v13")
        a(f"s_add_u32 s40, s40, {G2_SLOT}")
        a(f"s_cmp_ge_u32 s40, {G2_R*G2_SLOT}")
        a("s_cselect_b32 s40, 0, s40")
        for n in range(12):
            g = u*12 + n
            if n + PD < 12: rd(g + PD, cur, n + PD)
            else: rd(g + PD, nxt, n + PD - 12)
            if n == 1: bload((u + 2) % 3)
            if n == 3: dma()
            a(f"s_waitcnt lgkmcnt({2*PD})")
            kk, j = divmod(n, 6)
            f = AF + 4*(g % 6)
            hb = HB + 8*u + 4*kk
            a(f"v_mfma_f32_32x32x16_bf16 v[{ACC+16*j}:{ACC+16*j+15}], v[{f}:{f+3}], v[{hb}:{hb+3}], v[{ACC+16*j}:{ACC+16*j+15}]")
        a(f"v_mov_b32 v{cur}, v{nxt}")
    a("s_add_u32 s41, s41, 1")
    a("s_cmp_lt_u32 s41, 5")
    a("s_cbranch_scc1 LG2_loop")
    stamp(a, 3)
    a("s_waitcnt vmcnt(0) lgkmcnt(0)")
    a("s_barrier")
    a.nop(12)
    a("v_lshlrev_b32 v4, 4, v2")
    a(f"s_mul_i32 s42, s20, 12288")
    a("v_add_u32 v5, s42, v4")
    a("s_xor_b32 s43, s20, 4")
    a(f"s_mul_i32 s43, s43, 12288")
    a("v_add_u32 v6, s43, v4")
    a("s_cmp_lt_u32 s20, 4")
    a("s_cbranch_scc0 LG2_hi")
    for q in range(12): a(f"ds_write_b128 v5, v[{ACC+48+4*q}:{ACC+48+4*q+3}] offset:{1024*q}")
    a("s_branch LG2_x")
    a("LG2_hi:")
    for q in range(12): a(f"ds_write_b128 v5, v[{ACC+4*q}:{ACC+4*q+3}] offset:{1024*q}")
    for r in range(48): a(f"v_mov_b32 v{ACC+r}, v{ACC+48+r}")
    a("LG2_x:")
    a("s_waitcnt lgkmcnt(0)")
    a("s_barrier")
    for q in range(12): a(f"ds_read_b128 v[{ACC+48+4*q}:{ACC+48+4*q+3}], v6 offset:{1024*q}")
    a("s_waitcnt lgkmcnt(0)")
    for r in range(48): a(f"v_add_f32 v{ACC+r}, v{ACC+r}, v{ACC+48+r}")
    a("s_lshl_b32 s31, s21, 2")
    a("s_and_b32 s29, s20, 3")
    a("s_add_u32 s31, s31, s29")
    a("s_mul_i32 s31, s31, 18")
    a("s_mul_i32 s33, s26, 6")
    a("s_add_u32 s31, s31, s33")
    a("s_mul_i32 s33, s34, 3")
    a("s_add_u32 s31, s31, s33")
    a("s_lshl_b32 s31, s31, 11")
    a(f"s_mul_i32 s33, s22, {PLANE}")
    a("s_add_u32 s31, s31, s33")
    a("v_add_u32 v4, s31, v4")
    for t in range(3):
        for p in range(2):
            o = 112 + 4*((2*t+p) % 2)
            for r in range(4):
                a(f"v_cvt_pk_bf16_f32 v{o+r}, v{ACC+16*t+8*p+2*r}, v{ACC+16*t+8*p+2*r+1}")
            if t < 2:
                a(f"buffer_store_dwordx4 v[{o}:{o+3}], v4, s[16:19], 0 offen offset:{2048*t+1024*p}")
            else:
                a("s_mov_b32 s44, 4096")
                a(f"buffer_store_dwordx4 v[{o}:{o+3}], v4, s[16:19], s44 offen offset:{1024*p}")
            a("s_nop 1")
    stamp(a, 4)
    if gen.STAMP:
        a("s_waitcnt vmcnt(0)")
        stamp(a, 5)
        stamp_out(a, 6)
    a("LG2_done:")
    a("s_endpgm")
    return kernel_desc(name, 160, 96)

def gen_R(a):
    name = "red_kernel"
    a(kernel_head(name))
    a("s_cmp_ge_u32 s2, 576")
    a("s_cbranch_scc1 LR_done")
    a(f"s_load_dwordx2 s[4:5], s[0:1], {K_OUT}")
    a(f"s_load_dwordx2 s[24:25], s[0:1], {K_WS}")
    a("s_mov_b32 s30, 0xffff0000")
    a("s_lshl_b32 s3, s2, 8")
    a("v_add_u32 v1, s3, v0")
    a("v_lshlrev_b32 v2, 4, v1")
    a("v_and_b32 v3, 63, v0")
    a("v_lshrrev_b32 v4, 6, v1")
    a("v_and_b32 v5, 1, v4")
    a("v_lshrrev_b32 v4, 1, v4")
    a("v_mul_u32_u24 v6, 3641, v4")
    a("v_lshrrev_b32 v6, 16, v6")
    a("v_mul_u32_u24 v7, 18, v6")
    a("v_sub_u32 v7, v4, v7")
    a("v_lshlrev_b32 v7, 5, v7")
    a("v_lshlrev_b32 v5, 4, v5")
    a("v_lshrrev_b32 v8, 5, v3")
    a("v_lshlrev_b32 v8, 3, v8")
    a("v_add3_u32 v7, v7, v5, v8")
    a("v_lshlrev_b32 v7, 1, v7")
    a("v_lshlrev_b32 v6, 5, v6")
    a("v_and_b32 v8, 31, v3")
    a("v_add_u32 v6, v6, v8")
    a("v_mul_u32_u24 v6, 1152, v6")
    a("v_add_u32 v6, v6, v7")
    a("s_waitcnt lgkmcnt(0)")
    srd(a, 8, 4, 5, PLANE)
    srd(a, 12, 24, 25, NSPLIT*PLANE, add=WS_PART)
    srd(a, 16, 24, 25, PLANE, add=WS_X1)
    srd(a, 20, 24, 25, 6912, add=WS_MOD)
    for k in range(NSPLIT):
        a(f"s_mov_b32 s28, {k*PLANE}")
        a(f"buffer_load_dwordx4 v[{12+4*k}:{12+4*k+3}], v2, s[12:15], s28 offen")
    a("buffer_load_dwordx4 v[32:35], v6, s[16:19], 0 offen")
    a(f"s_mov_b32 s28, {5*1152}")
    a("buffer_load_dwordx4 v[36:39], v7, s[20:23], s28 offen")
    a("s_waitcnt vmcnt(2)")
    S0 = 40
    for d in range(4): unpack2(a, S0+2*d, S0+2*d+1, 12+d, 30)
    for k in range(1, NSPLIT):
        for d in range(4):
            unpack2(a, 50, 51, 12+4*k+d, 30)
            a(f"v_add_f32 v{S0+2*d}, v{S0+2*d}, v50")
            a(f"v_add_f32 v{S0+2*d+1}, v{S0+2*d+1}, v51")
    for d in range(4): a(f"v_cvt_pk_bf16_f32 v{12+d}, v{S0+2*d}, v{S0+2*d+1}")
    a("s_nop 1")
    a("v_permlane32_swap_b32 v12, v14")
    a("v_permlane32_swap_b32 v13, v15")
    a("s_waitcnt vmcnt(0)")
    for d in range(4):
        unpack2(a, S0+2*d, S0+2*d+1, 12+d, 30)
        unpack2(a, 50, 51, 36+d, 30)
        a(f"v_mul_f32 v{S0+2*d}, v{S0+2*d}, v50")
        a(f"v_mul_f32 v{S0+2*d+1}, v{S0+2*d+1}, v51")
        rnd2(a, S0+2*d, S0+2*d+1, S0+2*d, S0+2*d+1, 52, 30)
        unpack2(a, 50, 51, 32+d, 30)
        a(f"v_add_f32 v{S0+2*d}, v{S0+2*d}, v50")
        a(f"v_add_f32 v{S0+2*d+1}, v{S0+2*d+1}, v51")
        a(f"v_cvt_pk_bf16_f32 v{16+d}, v{S0+2*d}, v{S0+2*d+1}")
    a("buffer_store_dwordx4 v[16:19], v6, s[8:11], 0 offen")
    a("LR_done:")
    a("s_endpgm")
    return kernel_desc(name, 56, 40)

def build_all(fname, kernels="ABC12R"):
    a = Asm()
    hdr = open("cdna_kernels/" + NAME + ".s.ref").read().split("; Override launch")[0]
    a.lines += hdr.rstrip("\n").split("\n")
    L = {"A": "; @launch kernel=kvt_kernel grid=(288,1,1) block=(256,1,1) lds=0",
         "B": f"; @launch kernel=conv_kernel grid=(252,1,1) block=(256,1,1) lds={4*WREG}",
         "C": "; @launch kernel=ln_kernel grid=(256,1,1) block=(576,1,1) lds=11264",
         "1": f"; @launch kernel=gemm1_kernel grid=(256,1,1) block=(512,1,1) lds={G1_R*G1_SLOT}",
         "2": f"; @launch kernel=gemm2_kernel grid=(240,1,1) block=(512,1,1) lds={G2_R*G2_SLOT}",
         "R": "; @launch kernel=red_kernel grid=(576,1,1) block=(256,1,1) lds=0",
         }
    for k in kernels: a(L[k])
    a('.amdgcn_target "amdgcn-amd-amdhsa--gfx950"')
    a(".text")
    descs = []
    G = {"A": gen_A, "B": gen_B, "C": gen_C, "1": gen_G1, "2": gen_G2, "R": gen_R}
    for k in dict.fromkeys(kernels):
        descs.append(G[k](a))
    a('.section .rodata,"a"')
    for d in descs: a(d)
    t = a.text()
    check(t, fname)
    open(fname, "w").write(t)

if __name__ == "__main__":
    import sys
    if len(sys.argv) > 1 and sys.argv[1] == "stamp": gen.STAMP = True
    build_all("all.s")
```
